```python
import torch

def _softmax(x, axis=-1):
    return torch.softmax(x, dim=axis)
def _gelu(x):
    return torch.nn.functional.gelu(x, approximate="tanh")
def _silu(x):
    return torch.nn.functional.silu(x)
def _sigmoid(x):
    return torch.sigmoid(x)
def _layernorm(x, axis=-1, eps=1e-5):
    m = x.mean(dim=axis, keepdim=True)
    v = x.var(dim=axis, keepdim=True, unbiased=False)
    return (x - m) / torch.sqrt(v + eps)
def _scatter_add(tgt, idx, src, axis=0):
    return tgt.clone().index_add_(axis, idx, src)
def _segment_sum(src, seg, n):
    out = torch.zeros((n,) + src.shape[1:], dtype=src.dtype)
    return out.index_add_(0, seg, src)
def _pad(x, pw):
    flat = tuple(v for pair in reversed(pw) for v in pair)
    return torch.nn.functional.pad(x, flat)

kernel_name = 'concat_heads__mha_block_cached__mha_block_cached__near_ridge'

def setup_inputs():

    _w = (lambda a: (lambda t: t.to(torch.bfloat16) if t.is_floating_point() else t)(torch.as_tensor(a)))
    def _A_setup():
        B, Sq, D = 16, 160, 640
        H, Sk, Dh = 32, 1024, 128
        return {
            "x": _w((lambda *s: torch.randn(*s, dtype=torch.bfloat16) * 0.8)(B, Sq, D)),
            "k_cache": _w((lambda *s: torch.randn(*s, dtype=torch.bfloat16) * 0.8)(B, H, Sk, Dh)),
            "v_cache": _w((lambda *s: torch.randn(*s, dtype=torch.bfloat16) * 0.05)(B, H, Sk, Dh)),
            "wq": _w((lambda *s: torch.randn(*s, dtype=torch.bfloat16) * 0.8)(D, H * Dh) * (D ** -0.5)),
            "wo": _w((lambda *s: torch.randn(*s, dtype=torch.bfloat16) * 0.05)(H * Dh, D) * ((H * Dh) ** -0.5)),
        }
    _A_in = _A_setup()

    def _B_setup():
        B, Sq, D = 16, 160, 640
        H, Sk, Dh = 32, 1024, 128
        return {
            "x": _w((lambda *s: torch.randn(*s, dtype=torch.bfloat16) * 0.8)(B, Sq, D)),
            "k_cache": _w((lambda *s: torch.randn(*s, dtype=torch.bfloat16) * 0.8)(B, H, Sk, Dh)),
            "v_cache": _w((lambda *s: torch.randn(*s, dtype=torch.bfloat16) * 0.05)(B, H, Sk, Dh)),
            "wq": _w((lambda *s: torch.randn(*s, dtype=torch.bfloat16) * 0.8)(D, H * Dh) * (D ** -0.5)),
            "wo": _w((lambda *s: torch.randn(*s, dtype=torch.bfloat16) * 0.05)(H * Dh, D) * ((H * Dh) ** -0.5)),
        }
    _B_in = _B_setup()

    return {
        "A_x": _A_in["x"],
        "A_k_cache": _A_in["k_cache"],
        "A_v_cache": _A_in["v_cache"],
        "A_wq": _A_in["wq"],
        "A_wo": _A_in["wo"],
        "B_x": _B_in["x"],
        "B_k_cache": _B_in["k_cache"],
        "B_v_cache": _B_in["v_cache"],
        "B_wq": _B_in["wq"],
        "B_wo": _B_in["wo"],
    }

def reference(A_x, A_k_cache, A_v_cache, A_wq, A_wo, B_x, B_k_cache, B_v_cache, B_wq, B_wo):
    def _A_ref(x, k_cache, v_cache, wq, wo):
        B, Sq, D = x.shape
        H, Dh = 32, 128
        q = (lambda x, *d: x.permute(*d))((x @ wq).reshape(B, Sq, H, Dh), 0, 2, 1, 3)
        scores = torch.einsum("bhqd,bhkd->bhqk", q, k_cache) * (Dh ** -0.5)
        p = _softmax(scores, axis=-1)
        o = torch.einsum("bhqk,bhkd->bhqd", p, v_cache)
        return (lambda x, *d: x.permute(*d))(o, 0, 2, 1, 3).reshape(B, Sq, H * Dh) @ wo

    def _B_ref(x, k_cache, v_cache, wq, wo):
        B, Sq, D = x.shape
        H, Dh = 32, 128
        q = (lambda x, *d: x.permute(*d))((x @ wq).reshape(B, Sq, H, Dh), 0, 2, 1, 3)
        scores = torch.einsum("bhqd,bhkd->bhqk", q, k_cache) * (Dh ** -0.5)
        p = _softmax(scores, axis=-1)
        o = torch.einsum("bhqk,bhkd->bhqd", p, v_cache)
        return (lambda x, *d: x.permute(*d))(o, 0, 2, 1, 3).reshape(B, Sq, H * Dh) @ wo

    a = _A_ref(A_x, A_k_cache, A_v_cache, A_wq, A_wo)
    b = _B_ref(B_x, B_k_cache, B_v_cache, B_wq, B_wo)
    return torch.concatenate([a, b], axis=-1)
```

```python
class Asm:
    def __init__(self):
        self.lines = []
        self.vm = []
        self.lg = []
        self.n_instr = 0

    def raw(self, s):
        self.lines.append(s)

    def e(self, s):
        self.lines.append("  " + s)
        self.n_instr += 1

    def c(self, s):
        self.lines.append("  ; " + s)

    def label(self, l):
        self.lines.append(l + ":")

    def vmem(self, s, tag):
        self.e(s)
        self.vm.append(tag)

    def lds(self, s, tag):
        self.e(s)
        self.lg.append(tag)

    @staticmethod
    def _count_after(q, pred):
        last = -1
        for i, t in enumerate(q):
            if pred(t):
                last = i
        if last < 0:
            return None
        return len(q) - 1 - last

    def wait(self, vm=None, lg=None):
        parts = []
        def mk(x):
            if callable(x):
                return x
            if isinstance(x, (list, tuple, set)):
                xs = set(x)
                return lambda t: t in xs
            return lambda t: t == x
        if vm is not None:
            if vm == 'all':
                n = 0 if self.vm else None
            else:
                n = self._count_after(self.vm, mk(vm))
            if n is not None:
                n = min(n, 63)
                parts.append(f"vmcnt({n})")
                self.vm = self.vm[len(self.vm) - n:] if n else []
        if lg is not None:
            if lg == 'all':
                n = 0 if self.lg else None
            else:
                n = self._count_after(self.lg, mk(lg))
            if n is not None:
                n = min(n, 15)
                parts.append(f"lgkmcnt({n})")
                self.lg = self.lg[len(self.lg) - n:] if n else []
        if parts:
            self.e("s_waitcnt " + " ".join(parts))

    def state(self):
        return (tuple(self.vm), tuple(self.lg))

    def set_state(self, st):
        self.vm = list(st[0]); self.lg = list(st[1])

    def text(self):
        return "\n".join(self.lines) + "\n"


def v(a, n=1):
    return f"v{a}" if n == 1 else f"v[{a}:{a+n-1}]"

def a(x, n=1):
    return f"a{x}" if n == 1 else f"a[{x}:{x+n-1}]"

def s(x, n=1):
    return f"s{x}" if n == 1 else f"s[{x}:{x+n-1}]"
```

```python
from asmlib import Asm, v, a, s
import struct

def f2u(x):
    return struct.unpack("<I", struct.pack("<f", x))[0]

QA, QB, QC = 16, 48, 80
QREG = {'A': QA, 'B': QB, 'C': QC}
SB = [112, 128]
PB = [144, 152]
CI = {'A': 160, 'B': 176, 'C': 192}
LR = {'A': 208, 'B': 209, 'C': 210}
AK, AV, AX, AW = 212, 220, 224, 228
VK, VV, VX, VW, VO = 232, 236, 237, 238, 239
AKH, AVH, AWH = 240, 248, 252
OACC = {'A': 0, 'B': 64, 'C': 128}
KF, VF = 192, 224
F = [192, 220]
SRD_K, SRD_V, SRD_X, SRD_W, SRD_O = 4, 8, 12, 16, 20
S_W, S_LDSKV, S_W1K = 24, 25, 26
S_KOFF, S_VOFF, S_XCH, S_WCH, S_LOOP, S_ROUND = 27, 28, 29, 30, 31, 32
S_T0, S_T1, S_T2, S_T3 = 33, 34, 35, 36
S_OH = 37
S_C = 38
S_OA, S_OA2 = 39, 40
S_LO, S_HI = 41, 42
SLOT = [0, 32768, 65536, 98304]
XA = [98304, 118784, 139264]
EREG = 131072
EXCH = 32768
LX = 159744
QCX = 131072

SCALE = 1.4426950408889634 / (128.0 ** 0.5)

class K1:
    def __init__(self, name="attn_kernel", rot=True, debug=None):
        self.A = Asm()
        self.name = name
        self.rot = rot
        self.debug = debug

    def dma_K(self, n):
        A = self.A
        slot = SLOT[n % 4]
        ops = []
        def g0():
            A.e(f"s_add_u32 m0, {s(S_LDSKV)}, {slot}")
            A.e("s_nop 0")
            A.vmem(f"buffer_load_dwordx4 {v(VK)}, {s(SRD_K,4)}, {s(S_KOFF)} offen nt lds", f"U{n}")
        ops.append(g0)
        for i in range(1, 4):
            def gi(i=i):
                A.vmem(f"buffer_load_dwordx4 {v(VK+i)}, {s(SRD_K,4)}, {s(S_KOFF)} offen offset:{i*1024} nt lds", f"U{n}")
                if i == 3:
                    A.e(f"s_add_u32 {s(S_KOFF)}, {s(S_KOFF)}, 8192")
            ops.append(gi)
        return ops

    def dma_V(self, n):
        A = self.A
        slot = SLOT[n % 4] + 16384
        ops = []
        def g0():
            A.e(f"s_add_u32 m0, {s(S_LDSKV)}, {slot}")
            A.e("s_nop 0")
            A.vmem(f"buffer_load_dwordx4 {v(VV)}, {s(SRD_V,4)}, {s(S_VOFF)} offen nt lds", f"U{n}")
        ops.append(g0)
        for i in range(1, 4):
            def gi(i=i):
                A.vmem(f"buffer_load_dwordx4 {v(VV)}, {s(SRD_V,4)}, {s(S_VOFF)} offen offset:{i*1024} nt lds", f"U{n}")
                if i == 3:
                    A.e(f"s_add_u32 {s(S_VOFF)}, {s(S_VOFF)}, 8192")
            ops.append(gi)
        return ops

    def dma_unit(self, n):
        ops = []
        if n <= 31:
            ops += self.dma_K(n)
        if n >= 1:
            ops += self.dma_V(n)
        return ops

    def dma_X(self, j, tag):
        A = self.A
        area = XA[(j + 2) % 3]
        ops = []
        for m in range(5):
            def g(m=m):
                A.e(f"s_add_u32 m0, {s(S_W1K)}, {area + m*4096}")
                if m:
                    A.e(f"s_add_u32 {s(S_T0)}, {s(S_XCH)}, {m*40960}")
                    so = s(S_T0)
                else:
                    A.e("s_nop 0")
                    so = s(S_XCH)
                A.vmem(f"buffer_load_dwordx4 {v(VX)}, {s(SRD_X,4)}, {so} offen lds", tag)
            ops.append(g)
        return ops

    def dma_W(self, j, tag):
        A = self.A
        slot = SLOT[(j + 2) % 3]
        ops = []
        for m in range(8):
            def g(m=m):
                A.e(f"s_add_u32 m0, {s(S_W1K)}, {slot + m*4096}")
                if m:
                    A.e(f"s_add_u32 {s(S_T0)}, {s(S_WCH)}, {m*65536}")
                    so = s(S_T0)
                else:
                    A.e("s_nop 0")
                    so = s(S_WCH)
                A.vmem(f"buffer_load_dwordx4 {v(VW)}, {s(SRD_W,4)}, {so} offen lds", tag)
                if m == 7:
                    A.e(f"s_add_u32 {s(S_XCH)}, {s(S_XCH)}, 128")
                    A.e(f"s_add_u32 {s(S_WCH)}, {s(S_WCH)}, 524288")
                    A.e(f"s_cmp_eq_u32 {s(S_XCH)}, 1280")
                    A.e(f"s_cselect_b32 {s(S_XCH)}, 0, {s(S_XCH)}")
                    A.e(f"s_cselect_b32 {s(S_T0)}, 5242880, 0")
                    A.e(f"s_sub_u32 {s(S_WCH)}, {s(S_WCH)}, {s(S_T0)}")
            ops.append(g)
        return ops

    def run_stream(self, mfmas, gaps, pre=None):
        for i, m in enumerate(mfmas):
            if pre and i in pre:
                for f in pre[i]:
                    f()
            m()
            for f in gaps.get(i, []):
                f()

    def q_reads(self, p, j, ks, fb):
        A = self.A
        Fb = F[fb]
        wslot = (j + 2) % 3
        ops = []
        tag = f"F{fb}"
        for t in range(4):
            for vv in range(2):
                if wslot < 2:
                    addr, off = AW + t, SLOT[wslot] + ks * 8192 + vv * 2048
                else:
                    addr, off = AWH + t, ks * 8192 + vv * 2048
                ops.append(lambda addr=addr, off=off, d=Fb + 4*t + 2*vv:
                           A.lds(f"ds_read_b64_tr_b16 {a(d,2)}, {v(addr)} offset:{off}", tag))
        xrel = XA[(j + 2) % 3] - XA[0]
        for i, qoff in enumerate((0, 4096, (4 - 2*p) * 4096)):
            ops.append(lambda d=Fb + 16 + 4*i, off=xrel + qoff, ks=ks:
                       A.lds(f"ds_read_b128 {a(d,4)}, {v(AX+ks)} offset:{off}", tag))
        order = [0, 1, 8, 9, 2, 3, 10, 4, 5, 6, 7]
        return [ops[i] for i in order]

    def q_mfmas(self, p, fb, first):
        A = self.A
        Fb = F[fb]
        ms = []
        for t in range(4):
            lst = [(0 + 16*t, 16), (64 + 16*t, 20)]
            if t in (2*p, 2*p + 1):
                lst.append((128 + 16*(t - 2*p), 24))
            for acc, xo in lst:
                c = "0" if first else a(acc, 16)
                ms.append(lambda acc=acc, xo=xo, t=t, c=c:
                          A.e(f"v_mfma_f32_32x32x16_bf16 {a(acc,16)}, {a(Fb+4*t,4)}, {a(Fb+xo,4)}, {c}"))
        return ms

    def q_group(self, p, fb, first, reads, dmas):
        A = self.A
        ms = self.q_mfmas(p, fb, first)
        gaps = {}
        r = list(reads)
        g = 0
        while r:
            gaps.setdefault(g, []).extend(r[:2]); r = r[2:]; g += 1
        d = list(dmas)
        slots = [6, 7, 8, 9, 5, 4]
        k = 0
        while d:
            gaps.setdefault(slots[k % len(slots)], []).append(None)
            k += 1; d.pop()
        cnt = {gi: gaps[gi].count(None) for gi in gaps}
        d = list(dmas)
        for gi in sorted(gaps):
            gaps[gi] = [x for x in gaps[gi] if x is not None]
            for _ in range(cnt[gi]):
                gaps[gi].append(d.pop(0))
        A.wait(lg=f"F{fb}")
        self.run_stream(ms, gaps)

    def q_phase(self, p):
        A = self.A
        A.c("==== Q phase ====")
        for j in range(10):
            if j > 0:
                A.wait(vm=f"C{j}", lg='all')
            A.e("s_barrier")
            if j <= 7:
                dm = self.dma_X(j + 2, f"C{j+2}") + self.dma_W(j + 2, f"C{j+2}")
            elif j == 8:
                dm = self.dma_unit(0)
            else:
                dm = self.dma_unit(1)
            parts = [dm[0:len(dm)*1//4], dm[len(dm)*1//4:len(dm)*2//4], dm[len(dm)*2//4:len(dm)*3//4], dm[len(dm)*3//4:]]
            if j >= 8:
                parts = [dm[0:4], dm[4:8], [], []]
            if j == 0:
                for f in self.q_reads(p, 0, 0, 0):
                    f()
                for f in parts[0]:
                    f()
            else:
                self.q_group(p, 1, False, self.q_reads(p, j, 0, 0), parts[0])
            self.q_group(p, 0, j == 0, self.q_reads(p, j, 1, 1), parts[1])
            self.q_group(p, 1, False, self.q_reads(p, j, 2, 0), parts[2])
            self.q_group(p, 0, False, self.q_reads(p, j, 3, 1), parts[3])
        A.wait(lg='all')
        A.e("s_barrier")
        self.q_group(p, 1, False, [], self.dma_unit(2)[:4])
        self.pending_dma = self.dma_unit(2)[4:]

    def convert_q(self, p):
        A = self.A
        A.c("==== Q conversion ====")
        A.e("s_nop 15")
        pend = list(self.pending_dma)
        tiles = [('A', t, 0 + 16*t, QA + 8*t) for t in range(4)] + [('B', t, 64 + 16*t, QB + 8*t) for t in range(4)]
        tiles = [('C', i, 128 + 16*i, QC + 8*(2*p + i)) for i in range(2)] + tiles
        for idx, (nm, t, acc, dst) in enumerate(tiles):
            T = SB[idx % 2]
            for j in range(16):
                A.e(f"v_accvgpr_read_b32 {v(T+j)}, {a(acc+j)}")
            for j in range(16):
                A.e(f"v_mul_f32 {v(T+j)}, {s(S_C)}, {v(T+j)}")
            for k in range(8):
                A.e(f"v_cvt_pk_bf16_f32 {v(dst+k)}, {v(T+2*k)}, {v(T+2*k+1)}")
            if idx == 1:
                A.e(f"v_add_u32 {v(1)}, {s(S_T1)}, {v(VO)}")
                for f in range(4):
                    A.lds(f"ds_write_b128 {v(1)}, {v(QC + 16*p + 4*f, 4)} offset:{f*1024}", "QX")
                for fn in pend:
                    fn()
                pend = []
        A.wait(lg='all')
        A.e("s_barrier")
        A.e(f"v_add_u32 {v(2)}, {s(S_T2)}, {v(VO)}")
        for f in range(4):
            A.lds(f"ds_read_b128 {v(QC + 16*(1-p) + 4*f, 4)}, {v(2)} offset:{f*1024}", "QX")
        for nm in 'ABC':
            A.e(f"v_mov_b32 {v(LR[nm])}, 0")

    @staticmethod
    def tile_of(t):
        return "ABCAB"[t % 5]

    @staticmethod
    def kt_of(t, p):
        i, sg = divmod(t, 5)
        if sg < 2:
            return 2*i
        if sg == 2:
            return 2*i + p
        return 2*i + 1

    def k_reads(self, n):
        A = self.A
        sl = n % 4
        base = AK if sl < 2 else AKH
        off = (sl % 2) * 32768
        return [lambda sx=sx: A.lds(f"ds_read_b128 {a(KF+4*sx,4)}, {v(base+sx)} offset:{off}", f"K{sx}") for sx in range(8)]

    def v_reads(self, kt):
        A = self.A
        sl = (kt + 1) % 4
        base = AV if sl < 2 else AVH
        off = (sl % 2) * 32768
        out = []
        for u in range(2):
            for t in range(4):
                d = VF + (t*2 + u) * 4
                out.append([lambda d=d, t=t, u=u, vv=vv: A.lds(
                    f"ds_read_b64_tr_b16 {a(d+2*vv,2)}, {v(base+t)} offset:{off + u*4096 + vv*2048}", f"V{u*4+t}") for vv in range(2)])
        return out

    def att_step(self, t, p, dmas, carry, barrier_unit=None):
        A = self.A
        NT = 80
        A.c(f"-- step {t} (p={p})")
        do_qk = t < NT
        do_sm = 0 <= t - 1 < NT
        do_pv = 0 <= t - 2 < NT
        ms = []
        if do_qk:
            tl = self.tile_of(t)
            Sb = SB[t % 2]
            for sx in range(8):
                c = v(CI[tl], 16) if sx == 0 else v(Sb, 16)
                ms.append(lambda sx=sx, c=c, tl=tl, Sb=Sb: A.e(
                    f"v_mfma_f32_32x32x16_bf16 {v(Sb,16)}, {a(KF+4*sx,4)}, {v(QREG[tl]+4*sx,4)}, {c}"))
        npv0 = len(ms)
        if do_pv:
            tl2 = self.tile_of(t - 2)
            Pb = PB[(t - 2) % 2]
            first = (t - 2) < 3
            for u in range(2):
                for tt in range(4):
                    acc = OACC[tl2] + 16*tt
                    c = "0" if (first and u == 0) else a(acc, 16)
                    ms.append(lambda acc=acc, tt=tt, u=u, c=c, Pb=Pb: A.e(
                        f"v_mfma_f32_32x32x16_bf16 {a(acc,16)}, {a(VF+(tt*2+u)*4,4)}, {v(Pb+4*u,4)}, {c}"))
        nm = len(ms)
        gaps = {i: [] for i in range(max(nm, 1))}
        pre = {}
        first_gap = []
        if barrier_unit is not None:
            def bar():
                A.wait(vm=f"U{barrier_unit}", lg='all')
                A.e("s_barrier")
            first_gap.append(bar)
        newcarry = []
        if do_qk and t + 1 < NT and self.kt_of(t + 1, p) != self.kt_of(t, p):
            kr = self.k_reads(self.kt_of(t + 1, p))
            for sx in range(8):
                g = sx + 1
                if g < nm:
                    gaps[g].append(kr[sx])
                else:
                    newcarry.append(kr[sx])
        if 0 <= t - 1 < NT and (t - 2 < 0 or self.kt_of(t - 1, p) != self.kt_of(t - 2, p)):
            vr = self.v_reads(self.kt_of(t - 1, p))
            for idx in range(8):
                g = npv0 + idx + 1 if do_pv else npv0 + idx - 8 + 8
                if not do_pv:
                    g = min(idx, nm - 1)
                if g < nm:
                    gaps[g].extend(vr[idx])
                else:
                    newcarry.extend(vr[idx])
        valu = []
        if do_sm:
            tl1 = self.tile_of(t - 1)
            Sp = SB[(t - 1) % 2]
            Pn = PB[(t - 1) % 2]
            lr = LR[tl1]
            ex = lambda j: (lambda: A.e(f"v_exp_f32 {v(Sp+j)}, {v(Sp+j)}"))
            ad = lambda j: (lambda: A.e(f"v_add_f32 {v(lr)}, {v(lr)}, {v(Sp+j)}"))
            cv = lambda k: (lambda: A.e(f"v_cvt_pk_bf16_f32 {v(Pn+k)}, {v(Sp+2*k)}, {v(Sp+2*k+1)}"))
            per = []
            for j in range(16):
                g = [ex(j)]
                if j >= 1:
                    g.append(ad(j - 1))
                if j >= 2 and j % 2 == 0:
                    g.append(cv(j // 2 - 1))
                per.append(g)
            tail = [ad(15), cv(7)]
            if nm >= 16:
                for j in range(16):
                    valu.append(per[j])
                valu[15] = valu[15] + [lambda: A.e("s_nop 0")] + tail if False else valu[15]
                valu_tail = tail
            else:
                ng = max(nm, 1)
                tmp = [[] for _ in range(ng)]
                for j in range(16):
                    tmp[j * ng // 16].extend(per[j])
                valu = tmp
                valu_tail = tail
        else:
            valu_tail = []
        if do_qk:
            pre.setdefault(0, []).append(lambda: A.wait(lg=lambda tg: tg.startswith("K")))
            for sx in range(1, 8):
                pre.setdefault(sx, []).append(lambda sx=sx: A.wait(lg=f"K{sx}"))
        if do_pv:
            pre.setdefault(npv0, []).append(lambda: A.wait(lg=lambda tg: tg.startswith("V")))
            for idx in range(1, 8):
                pre.setdefault(npv0 + idx, []).append(lambda idx=idx: A.wait(lg=f"V{idx}"))
        ng = max(nm, 1)
        load = {g: len(gaps[g]) for g in range(ng)}
        dm = list(dmas)
        place = {g: [] for g in range(ng)}
        if dm:
            cand = [g for g in range(1, ng)] or [0]
            n = len(dm)
            pos = [cand[(k * len(cand)) // n] for k in range(n)]
            for k, g in enumerate(pos):
                place[g].append(dm[k])
        if nm == 0:
            for f in first_gap + carry: f()
            for g in valu:
                for f in g: f()
            if valu_tail:
                A.e("s_nop 0")
                for f in valu_tail: f()
            for f in dm: f()
            return newcarry
        for i, m in enumerate(ms):
            for f in pre.get(i, []):
                f()
            m()
            if i == 0:
                for f in first_gap + list(carry):
                    f()
            vl = valu[i] if i < len(valu) else []
            if i == 0 and do_sm and t in (1, 2):
                A.e("s_nop 12")
            if vl:
                vl[0]()
            for f in gaps[i]:
                f()
            for f in vl[1:]:
                f()
            for f in place[i]:
                f()
            if i == nm - 1 and valu_tail:
                if not gaps[i] and len(vl) <= 1 and not place[i]:
                    A.e("s_nop 0")
                for f in valu_tail:
                    f()
        return newcarry

    def interval_dmas(self, n):
        if n + 3 <= 32:
            return self.dma_unit(n + 3)
        if n == 30:
            return self.dma_X(0, "C0")
        if n == 31:
            return self.dma_W(0, "C0")
        if n == 32:
            return self.dma_X(1, "C1")
        if n == 33:
            return self.dma_W(1, "C1")
        return []

    def att_range(self, p, t0, t1, carry):
        for t in range(t0, t1):
            i, sg = divmod(t, 5)
            bu = None
            dm = []
            if sg == 1:
                n = 2*i + 1; bu = n
                d = self.interval_dmas(n); self._dq = d
                dm = d[:len(d)//2] if len(d) == 8 else d[:(len(d)+1)//2]
                self._dq = d[len(dm):]
            elif sg == 2:
                dm = self._dq; self._dq = []
            elif sg == 3:
                if t < 80 + 5:
                    n = 2*i + 2; bu = n
                    d = self.interval_dmas(n)
                    dm = d[:len(d)//2] if len(d) == 8 else d[:(len(d)+1)//2]
                    self._dq = d[len(dm):]
            elif sg == 4:
                dm = self._dq; self._dq = []
            carry = self.att_step(t, p, dm, carry, bu)
        return carry

    def attention(self, p, lbl):
        A = self.A
        A.c("==== attention ====")
        A.wait(vm="U0", lg='all')
        A.e("s_barrier")
        d0 = self.interval_dmas(0)
        for f in self.k_reads(0):
            f()
        for f in d0:
            f()
        self._dq = []
        carry = self.att_step(0, p, [], [], None)
        carry = self.att_range(p, 1, 11, carry)
        A.e(f"s_mov_b32 {s(S_LOOP)}, 6")
        st0 = A.state()
        assert not carry or True
        carry_in = carry
        A.label(f"{lbl}_loop")
        start = len(A.lines)
        carry = self.att_range(p, 11, 21, carry_in)
        body1 = A.lines[start:]
        A.e(f"s_sub_u32 {s(S_LOOP)}, {s(S_LOOP)}, 1")
        A.e(f"s_cmp_lg_u32 {s(S_LOOP)}, 0")
        A.e(f"s_cbranch_scc1 {lbl}_loop")
        st1 = A.state()
        save = A.lines; A.lines = []
        carry2 = self.att_range(p, 21, 31, carry)
        body2 = A.lines
        A.lines = save
        strip = lambda L: [x for x in L if not x.strip().startswith(";")]
        assert strip(body1) == strip(body2), "loop body not in steady state"
        save = A.lines; A.lines = []
        c = carry2
        c = self.att_range(p, 31, 71, c)
        A.lines = save
        carry = self.att_range(p, 71, 82, c)
        assert not carry

    def epilogue(self, p, lbl):
        A = self.A
        A.c("==== epilogue ====")
        T0, T1 = SB
        PT = PB[0]
        A.e("s_nop 15")
        for f in self._dq:
            f()
        self._dq = []
        for nm in 'ABC':
            A.e(f"v_mov_b32 {v(1)}, {v(LR[nm])}")
            A.e("s_nop 1")
            A.e(f"v_permlane32_swap_b32 {v(1)}, {v(LR[nm])}")
            A.e("s_nop 1")
            A.e(f"v_add_f32 {v(LR[nm])}, {v(LR[nm])}, {v(1)}")
        A.e(f"s_lshl_b32 {s(S_T1)}, {s(S_W)}, 13")
        A.e(f"s_add_u32 {s(S_T1)}, {s(S_T1)}, {EXCH}")
        A.e(f"v_add_u32 {v(2)}, {s(S_T1)}, {v(VO)}")
        send = OACC['C'] + 32 * (1 - p)
        for g in range(8):
            A.lds(f"ds_write_b128 {v(2)}, {a(send + 4*g, 4)} offset:{g*1024}", "EX")
        A.e(f"s_lshl_b32 {s(S_T2)}, {s(S_W)}, 8")
        A.e(f"s_add_u32 {s(S_T2)}, {s(S_T2)}, {LX}")
        A.e(f"v_lshrrev_b32 {v(3)}, 2, {v(VO)}")
        A.e(f"v_add_u32 {v(4)}, {s(S_T2)}, {v(3)}")
        A.lds(f"ds_write_b32 {v(4)}, {v(LR['C'])}", "EX")
        A.wait(lg='all')
        A.e("s_barrier")
        A.e(f"s_xor_b32 {s(S_T1)}, {s(S_W)}, 1")
        A.e(f"s_lshl_b32 {s(S_T2)}, {s(S_T1)}, 8")
        A.e(f"s_lshl_b32 {s(S_T1)}, {s(S_T1)}, 13")
        A.e(f"s_add_u32 {s(S_T1)}, {s(S_T1)}, {EXCH}")
        A.e(f"s_add_u32 {s(S_T2)}, {s(S_T2)}, {LX}")
        A.e(f"v_add_u32 {v(2)}, {s(S_T1)}, {v(VO)}")
        A.e(f"v_add_u32 {v(4)}, {s(S_T2)}, {v(3)}")
        for g in range(8):
            A.lds(f"ds_read_b128 {v(T0 + 4*g, 4)}, {v(2)} offset:{g*1024}", "EX2")
        A.lds(f"ds_read_b32 {v(5)}, {v(4)}", "EXL")
        def norm_store(acc, rreg, soff_setup, t, addsrc=None, k=0):
            Tm = CT[k % 2]
            Pk = PT + 8 * (k % 2)
            for j in range(16):
                A.e(f"v_accvgpr_read_b32 {v(Tm+j)}, {a(acc+j)}")
            if addsrc is not None:
                for j in range(16):
                    A.e(f"v_add_f32 {v(Tm+j)}, {v(Tm+j)}, {v(addsrc+j)}")
            for j in range(16):
                A.e(f"v_mul_f32 {v(Tm+j)}, {v(rreg)}, {v(Tm+j)}")
            for kk in range(8):
                A.e(f"v_cvt_pk_bf16_f32 {v(Pk+kk)}, {v(Tm+2*kk)}, {v(Tm+2*kk+1)}")
            for u in range(2):
                sx = 2*t + u
                so = s(S_OA) if sx < 4 else s(S_OA2)
                A.vmem(f"buffer_store_dwordx4 {v(Pk+4*u,4)}, {v(VO)}, {s(SRD_O,4)}, {so} offen offset:{(sx%4)*1024}", "ST")
        CT = [QA, QA + 16]
        k = 0
        for nm, qt in (('A', 2*p), ('B', 2*p + 1)):
            A.e(f"v_rcp_f32 {v(6)}, {v(LR[nm])}")
            A.e(f"s_add_u32 {s(S_OA)}, {s(S_OH)}, {qt*262144}")
            A.e(f"s_add_u32 {s(S_OA2)}, {s(S_OA)}, 4096")
            for t in range(4):
                norm_store(OACC[nm] + 16*t, 6, None, t, None, k); k += 1
        A.wait(lg='all')
        A.e(f"v_add_f32 {v(LR['C'])}, {v(LR['C'])}, {v(5)}")
        A.e("s_nop 0")
        A.e(f"v_rcp_f32 {v(6)}, {v(LR['C'])}")
        A.e(f"s_add_u32 {s(S_OA)}, {s(S_OH)}, {4*262144}")
        A.e(f"s_add_u32 {s(S_OA2)}, {s(S_OA)}, 4096")
        for i in range(2):
            t = 2*p + i
            norm_store(OACC['C'] + 16*t, 6, None, t, T0 + 16*i, k); k += 1

    def setup(self):
        A = self.A
        e = A.e
        e(f"s_cmp_ge_u32 s2, 256")
        e(f"s_cbranch_scc1 {self.name}_done")
        e("s_load_dwordx16 s[48:63], s[0:1], 0")
        e("s_load_dwordx4 s[64:67], s[0:1], 64")
        e("s_load_dwordx2 s[68:69], s[0:1], 96")
        e(f"v_lshrrev_b32 {v(1)}, 6, v0")
        e(f"v_and_b32 {v(2)}, 63, v0")
        e("s_nop 0")
        e(f"v_readfirstlane_b32 {s(S_W)}, {v(1)}")
        e("s_and_b32 s70, s2, 7")
        e("s_lshr_b32 s71, s2, 3")
        e("s_lshr_b32 s72, s70, 2")
        e("s_lshr_b32 s73, s70, 1")
        e("s_and_b32 s73, s73, 1")
        e("s_and_b32 s74, s70, 1")
        e("s_and_b32 s75, s71, 7")
        e("s_lshr_b32 s76, s71, 3")
        e("s_lshl_b32 s77, s73, 3")
        e("s_add_u32 s77, s77, s75")
        e("s_lshl_b32 s78, s74, 3")
        e("s_add_u32 s78, s78, s76")
        if self.rot:
            e("s_lshl_b32 s79, s76, 1")
            e("s_add_u32 s79, s79, s75")
            e("s_cmp_ge_u32 s79, 10")
            e("s_cselect_b32 s80, 10, 0")
            e("s_sub_u32 s79, s79, s80")
        else:
            e("s_mov_b32 s79, 0")
        e("s_waitcnt lgkmcnt(0)")
        e("s_cmp_eq_u32 s72, 0")
        e("s_cselect_b64 s[82:83], s[48:49], s[58:59]")
        e("s_cselect_b64 s[84:85], s[50:51], s[60:61]")
        e("s_cselect_b64 s[86:87], s[52:53], s[62:63]")
        e("s_cselect_b64 s[88:89], s[54:55], s[64:65]")
        e("s_mul_i32 s80, s77, 204800")
        e(f"s_add_u32 {s(SRD_X)}, s82, s80")
        e(f"s_addc_u32 {s(SRD_X+1)}, s83, 0")
        e(f"s_and_b32 {s(SRD_X+1)}, {s(SRD_X+1)}, 0xffff")
        e(f"s_mov_b32 {s(SRD_X+2)}, 204800")
        e(f"s_mov_b32 {s(SRD_X+3)}, 0x20000")
        e(f"s_mov_b32 {s(SRD_W)}, s88")
        e(f"s_and_b32 {s(SRD_W+1)}, s89, 0xffff")
        e(f"s_mov_b32 {s(SRD_W+2)}, 5242880")
        e(f"s_mov_b32 {s(SRD_W+3)}, 0x20000")
        e("s_lshl_b32 s80, s77, 23")
        e("s_lshl_b32 s81, s78, 19")
        e("s_add_u32 s80, s80, s81")
        for srd, lo in ((SRD_K, 84), (SRD_V, 86)):
            e(f"s_add_u32 {s(srd)}, s{lo}, s80")
            e(f"s_addc_u32 {s(srd+1)}, s{lo+1}, 0")
            e(f"s_and_b32 {s(srd+1)}, {s(srd+1)}, 0xffff")
            e(f"s_mov_b32 {s(srd+2)}, 524288")
            e(f"s_mov_b32 {s(srd+3)}, 0x20000")
        e("s_lshl_b32 s80, s72, 4")
        e("s_add_u32 s80, s80, s77")
        e("s_mul_i32 s80, s80, 1310720")
        e(f"s_add_u32 {s(SRD_O)}, s68, s80")
        e(f"s_addc_u32 {s(SRD_O+1)}, s69, 0")
        e(f"s_and_b32 {s(SRD_O+1)}, {s(SRD_O+1)}, 0xffff")
        e(f"s_mov_b32 {s(SRD_O+2)}, 1310720")
        e(f"s_mov_b32 {s(SRD_O+3)}, 0x20000")
        e(f"s_lshr_b32 s80, {s(S_W)}, 1")
        e(f"s_and_b32 s81, {s(S_W)}, 1")
        e(f"s_lshl_b32 {s(S_LDSKV)}, s80, 13")
        e(f"s_lshl_b32 s90, s81, 12")
        e(f"s_add_u32 {s(S_LDSKV)}, {s(S_LDSKV)}, s90")
        e(f"s_lshl_b32 {s(S_W1K)}, {s(S_W)}, 10")
        e(f"s_lshl_b32 {s(S_OH)}, s78, 1")
        e(f"s_add_u32 {s(S_OH)}, {s(S_OH)}, s80")
        e(f"s_lshl_b32 {s(S_OH)}, {s(S_OH)}, 13")
        e(f"s_lshl_b32 {s(S_XCH)}, s79, 7")
        e(f"s_lshl_b32 {s(S_WCH)}, s79, 19")
        e(f"s_lshl_b32 s90, s78, 9")
        e(f"s_add_u32 {s(S_WCH)}, {s(S_WCH)}, s90")
        e(f"s_mov_b32 {s(S_C)}, {hex(f2u(SCALE))}")
        e(f"s_mov_b32 {s(S_ROUND)}, 0")
        L = 2
        t1, t2, t3, t4, t5 = 3, 4, 5, 6, 7
        e(f"v_lshlrev_b32 {v(VO)}, 4, {v(L)}")
        e(f"v_and_b32 {v(t1)}, 31, {v(L)}")
        e(f"v_lshlrev_b32 {v(t1)}, 8, {v(t1)}")
        e(f"s_lshl_b32 s90, s80, 13")
        e(f"v_add_u32 {v(t1)}, s90, {v(t1)}")
        e(f"v_lshrrev_b32 {v(t2)}, 5, {v(L)}")
        e(f"v_and_b32 {v(t3)}, 15, {v(L)}")
        e(f"v_xor_b32 {v(t2)}, {v(t2)}, {v(t3)}")
        for sx in range(8):
            e(f"v_xor_b32 {v(t4)}, {2*sx}, {v(t2)}")
            e(f"v_lshlrev_b32 {v(t4)}, 4, {v(t4)}")
            e(f"v_add_u32 {v(AK+sx)}, {v(t1)}, {v(t4)}")
            e(f"v_add_u32 {v(AKH+sx)}, 0x10000, {v(AK+sx)}")
        e(f"v_lshrrev_b32 {v(t1)}, 2, {v(L)}")
        e(f"v_and_b32 {v(t1)}, 3, {v(t1)}")
        e(f"v_lshrrev_b32 {v(t2)}, 5, {v(L)}")
        e(f"v_lshrrev_b32 {v(t3)}, 4, {v(L)}")
        e(f"v_and_b32 {v(t3)}, 1, {v(t3)}")
        e(f"v_lshlrev_b32 {v(t4)}, 2, {v(t2)}")
        e(f"v_add_u32 {v(t4)}, {v(t4)}, {v(t1)}")
        e(f"v_lshlrev_b32 {v(t4)}, 8, {v(t4)}")
        e(f"v_lshlrev_b32 {v(t5)}, 5, {v(t3)}")
        e(f"v_add_u32 {v(t4)}, {v(t4)}, {v(t5)}")
        e(f"v_and_b32 {v(t5)}, 2, {v(L)}")
        e(f"v_lshlrev_b32 {v(t5)}, 3, {v(t5)}")
        e(f"v_add_u32 {v(t4)}, {v(t4)}, {v(t5)}")
        e(f"v_and_b32 {v(t5)}, 1, {v(L)}")
        e(f"v_lshlrev_b32 {v(t5)}, 3, {v(t5)}")
        e(f"v_add_u32 {v(t4)}, {v(t4)}, {v(t5)}")
        e(f"s_lshl_b32 s90, s80, 13")
        e(f"s_add_u32 s90, s90, 16384")
        e(f"v_add_u32 {v(t4)}, s90, {v(t4)}")
        for t in range(4):
            e(f"v_xor_b32 {v(t5)}, {t}, {v(t1)}")
            e(f"v_lshlrev_b32 {v(t5)}, 6, {v(t5)}")
            e(f"v_add_u32 {v(AV+t)}, {v(t4)}, {v(t5)}")
            e(f"v_add_u32 {v(AVH+t)}, 0x10000, {v(AV+t)}")
        e(f"v_lshlrev_b32 {v(t4)}, 3, {v(t2)}")
        e(f"v_add_u32 {v(t4)}, {v(t4)}, {v(t1)}")
        e(f"v_lshlrev_b32 {v(t4)}, 9, {v(t4)}")
        e(f"v_lshlrev_b32 {v(t5)}, 5, {v(t3)}")
        e(f"v_add_u32 {v(t4)}, {v(t4)}, {v(t5)}")
        e(f"v_and_b32 {v(t5)}, 1, {v(L)}")
        e(f"v_lshlrev_b32 {v(t5)}, 4, {v(t5)}")
        e(f"v_add_u32 {v(t4)}, {v(t4)}, {v(t5)}")
        e(f"v_and_b32 {v(t5)}, 2, {v(L)}")
        e(f"v_lshlrev_b32 {v(t5)}, 2, {v(t5)}")
        e(f"v_add_u32 {v(t4)}, {v(t4)}, {v(t5)}")
        e(f"s_lshl_b32 s90, s80, 8")
        e(f"v_add_u32 {v(t4)}, s90, {v(t4)}")
        for t in range(4):
            e(f"v_xor_b32 {v(t5)}, {t}, {v(t1)}")
            e(f"v_lshlrev_b32 {v(t5)}, 6, {v(t5)}")
            e(f"v_add_u32 {v(AW+t)}, {v(t4)}, {v(t5)}")
            e(f"v_add_u32 {v(AWH+t)}, 0x10000, {v(AW+t)}")
        e(f"v_and_b32 {v(t4)}, 31, {v(L)}")
        e(f"v_lshlrev_b32 {v(t4)}, 7, {v(t4)}")
        e(f"s_lshl_b32 s90, s81, 13")
        e(f"s_add_u32 s90, s90, {XA[0]}")
        e(f"v_add_u32 {v(t4)}, s90, {v(t4)}")
        e(f"v_lshrrev_b32 {v(t5)}, 1, {v(L)}")
        e(f"v_and_b32 {v(t5)}, 7, {v(t5)}")
        e(f"v_xor_b32 {v(t5)}, {v(t5)}, {v(t2)}")
        for sx in range(4):
            e(f"v_xor_b32 {v(t3)}, {2*sx}, {v(t5)}")
            e(f"v_lshlrev_b32 {v(t3)}, 4, {v(t3)}")
            e(f"v_add_u32 {v(AX+sx)}, {v(t4)}, {v(t3)}")
        e(f"v_lshrrev_b32 {v(t1)}, 4, {v(L)}")
        e(f"v_and_b32 {v(t2)}, 15, {v(L)}")
        e(f"s_lshl_b32 s90, s80, 18")
        e(f"s_lshl_b32 s91, s81, 12")
        e(f"s_add_u32 s90, s90, s91")
        e(f"v_lshlrev_b32 {v(t3)}, 8, {v(t1)}")
        e(f"v_add_u32 {v(t3)}, s90, {v(t3)}")
        e(f"v_xor_b32 {v(t4)}, {v(t2)}, {v(t1)}")
        for i in range(4):
            e(f"v_xor_b32 {v(t5)}, {4*i}, {v(t4)}")
            e(f"v_lshlrev_b32 {v(t5)}, 4, {v(t5)}")
            e(f"v_add_u32 {v(VK+i)}, {v(t3)}, {v(t5)}")
        e(f"v_lshlrev_b32 {v(t5)}, 2, {v(t1)}")
        e(f"v_xor_b32 {v(t5)}, {v(t5)}, {v(t2)}")
        e(f"v_lshlrev_b32 {v(t5)}, 4, {v(t5)}")
        e(f"v_add_u32 {v(VV)}, {v(t3)}, {v(t5)}")
        e(f"v_lshrrev_b32 {v(t3)}, 3, {v(L)}")
        e(f"v_mul_u32_u24 {v(t3)}, 1280, {v(t3)}")
        e(f"s_mul_i32 s90, {s(S_W)}, 10240")
        e(f"v_add_u32 {v(t3)}, s90, {v(t3)}")
        e(f"s_lshl_b32 s90, s81, 2")
        e(f"v_add_u32 {v(t4)}, s90, {v(t1)}")
        e(f"v_and_b32 {v(t5)}, 7, {v(L)}")
        e(f"v_xor_b32 {v(t5)}, {v(t5)}, {v(t4)}")
        e(f"v_lshlrev_b32 {v(t5)}, 4, {v(t5)}")
        e(f"v_add_u32 {v(VX)}, {v(t3)}, {v(t5)}")
        e(f"v_lshrrev_b32 {v(t3)}, 5, {v(L)}")
        e(f"s_lshl_b32 s90, s81, 1")
        e(f"v_add_u32 {v(t4)}, s90, {v(t3)}")
        e(f"v_lshlrev_b32 {v(t4)}, 2, {v(t4)}")
        e(f"v_and_b32 {v(t5)}, 31, {v(L)}")
        e(f"v_xor_b32 {v(t5)}, {v(t5)}, {v(t4)}")
        e(f"v_lshlrev_b32 {v(t5)}, 4, {v(t5)}")
        e(f"v_lshlrev_b32 {v(t3)}, 13, {v(t3)}")
        e(f"v_add_u32 {v(t3)}, {v(t3)}, {v(t5)}")
        e(f"s_lshl_b32 s90, {s(S_W)}, 14")
        e(f"v_add_u32 {v(VW)}, s90, {v(t3)}")
        for nm in 'ABC':
            for j in range(16):
                e(f"v_mov_b32 {v(CI[nm]+j)}, 0")

    def job(self, p):
        A = self.A
        lbl = f"{self.name}_p{p}"
        for f in self.dma_X(0, "C0") + self.dma_W(0, "C0") + self.dma_X(1, "C1") + self.dma_W(1, "C1"):
            f()
        A.wait(vm="C0")
        st_entry = A.state()
        A.label(f"{lbl}_job")
        A.e(f"s_mov_b32 {s(S_KOFF)}, 0")
        A.e(f"s_mov_b32 {s(S_VOFF)}, 0")
        A.set_state((("C1",) * 13, ()))
        self.q_phase(p)
        A.e(f"s_add_u32 {s(S_WCH)}, {s(S_WCH)}, 2048")
        A.e(f"s_cmp_eq_u32 {s(S_ROUND)}, 1")
        A.e(f"s_cselect_b32 {s(SRD_X+2)}, 0, {s(SRD_X+2)}")
        A.e(f"s_cselect_b32 {s(SRD_W+2)}, 0, {s(SRD_W+2)}")
        A.e(f"s_lshl_b32 {s(S_T1)}, {s(S_W)}, 12")
        A.e(f"s_xor_b32 {s(S_T2)}, {s(S_T1)}, 4096")
        A.e(f"s_add_u32 {s(S_T1)}, {s(S_T1)}, {QCX}")
        A.e(f"s_add_u32 {s(S_T2)}, {s(S_T2)}, {QCX}")
        self.convert_q(p)
        self.attention(p, lbl)
        self.epilogue(p, lbl)
        A.e(f"s_add_u32 {s(S_ROUND)}, {s(S_ROUND)}, 1")
        A.e(f"s_cmp_eq_u32 {s(S_ROUND)}, 2")
        A.e(f"s_cbranch_scc1 {lbl}_end")
        for srd in (SRD_K, SRD_V):
            A.e(f"s_add_u32 {s(srd)}, {s(srd)}, {4*524288}")
            A.e(f"s_addc_u32 {s(srd+1)}, {s(srd+1)}, 0")
        A.e(f"s_add_u32 {s(S_OH)}, {s(S_OH)}, {8*8192}")
        A.wait(vm="C0")
        rest = list(A.vm)
        A.c(f"vm queue at job end: {len(rest)}")
        A.e(f"s_branch {lbl}_job")
        A.label(f"{lbl}_end")
        A.e("s_waitcnt vmcnt(0)")
        A.e(f"s_branch {self.name}_done")

    def build(self):
        A = self.A
        A.label(self.name)
        self.setup()
        A.e(f"s_and_b32 s90, {s(S_W)}, 1")
        A.e(f"s_cmp_eq_u32 s90, 1")
        A.e(f"s_cbranch_scc1 {self.name}_p1")
        far = False
        st = A.state()
        self.job(0)
        A.label(f"{self.name}_p1")
        A.set_state(st)
        self.job(1)
        A.label(f"{self.name}_done")
        A.e("s_endpgm")
        return A.text()
```

```python
from asmlib import Asm, v, a, s

ACC = 64
AF = [128, 144]
AA, AAH = 4, 8
VA, VO, VOUT = 12, 13, 14
BF = 0
SRD_B, SRD_A, SRD_OUT = 4, 8, 12
S_W, S_LDS, S_AOFF, S_BOFF, S_LOOP, S_T0, S_T1, S_OUT = 16, 17, 18, 19, 20, 21, 22, 23

class K2:
    def __init__(self, name="oproj_kernel"):
        self.A = Asm(); self.name = name

    def dma_A(self, c, i):
        A = self.A
        slot = (c % 4) * 32768
        def f():
            A.e(f"s_add_u32 m0, {s(S_LDS)}, {slot + i*1024}")
            if i:
                A.e(f"s_add_u32 {s(S_T0)}, {s(S_AOFF)}, {i*5120}")
                so = s(S_T0)
            else:
                A.e("s_nop 0"); so = s(S_AOFF)
            A.vmem(f"buffer_load_dwordx4 {v(VA)}, {s(SRD_A,4)}, {so} offen lds", f"G{c}")
            if i == 7:
                A.e(f"s_add_u32 {s(S_AOFF)}, {s(S_AOFF)}, {128*1280}")
        return f

    def load_B(self, c, ks):
        A = self.A
        d = BF + (c % 4) * 32 + ks * 4
        def f():
            if ks == 4:
                A.e(f"s_add_u32 {s(S_BOFF)}, {s(S_BOFF)}, 4096")
            A.vmem(f"buffer_load_dwordx4 {a(d,4)}, {v(VO)}, {s(SRD_B,4)}, {s(S_BOFF)} offen offset:{(ks%4)*1024}", f"G{c}")
            if ks == 7:
                A.e(f"s_add_u32 {s(S_BOFF)}, {s(S_BOFF)}, 4096")
        return f

    def reads(self, c, ks, fb):
        A = self.A
        sl = c % 4
        base = AA if sl < 2 else AAH
        off = (sl % 2) * 32768 + ks * 4096
        return [lambda t=t, vv=vv: A.lds(f"ds_read_b64_tr_b16 {v(AF[fb]+4*t+2*vv,2)}, {v(base+t)} offset:{off+vv*2048}", f"F{fb}")
                for t in range(4) for vv in range(2)]

    def group(self, c, ks, fb, reads, extra):
        A = self.A
        A.wait(lg=f"F{fb}")
        b = BF + (c % 4) * 32 + ks * 4
        for t in range(4):
            A.e(f"v_mfma_f32_32x32x16_bf16 {v(ACC+16*t,16)}, {v(AF[fb]+4*t,4)}, {a(b,4)}, {v(ACC+16*t,16)}")
            for f in reads[2*t:2*t+2]:
                f()
            if t == 1 and extra: extra[0]()
            if t == 3 and len(extra) > 1: extra[1]()

    def chunk(self, c):
        A = self.A
        A.wait(vm=f"G{c}", lg='all')
        A.e("s_barrier")
        ex = [[self.load_B(c+3, k), self.dma_A(c+3, k)] for k in range(8)]
        if c == 0 and self.first:
            for f in self.reads(0, 0, 0): f()
            for f in ex[0]: f()
        else:
            self.group(c-1, 7, 1, self.reads(c, 0, 0), ex[0])
        for ks in range(7):
            self.group(c, ks, ks % 2, self.reads(c, ks+1, (ks+1) % 2), ex[ks+1])

    def build(self):
        A = self.A; e = A.e
        A.label(self.name)
        e("s_cmp_ge_u32 s2, 200")
        e(f"s_cbranch_scc1 {self.name}_done")
        e("s_load_dwordx2 s[24:25], s[0:1], 32")
        e("s_load_dwordx2 s[26:27], s[0:1], 72")
        e("s_load_dwordx2 s[28:29], s[0:1], 80")
        e("s_load_dwordx2 s[30:31], s[0:1], 96")
        e("v_lshrrev_b32 v1, 6, v0")
        e("v_and_b32 v2, 63, v0")
        e("s_nop 0")
        e(f"v_readfirstlane_b32 {s(S_W)}, v1")
        e("s_and_b32 s32, s2, 7")
        e("s_lshr_b32 s33, s2, 3")
        e("s_lshr_b32 s34, s32, 2")
        e("s_and_b32 s35, s32, 3")
        e("s_mul_i32 s35, s35, 5")
        e("s_mul_i32 s36, s33, 52")
        e("s_lshr_b32 s36, s36, 8")
        e("s_add_u32 s35, s35, s36")
        e("s_mul_i32 s37, s36, 5")
        e("s_sub_u32 s37, s33, s37")
        e("s_lshl_b32 s35, s35, 2")
        e(f"s_add_u32 s35, s35, {s(S_W)}")
        e("s_waitcnt lgkmcnt(0)")
        e("s_cmp_eq_u32 s34, 0")
        e("s_cselect_b64 s[38:39], s[24:25], s[26:27]")
        e("s_mul_i32 s40, s34, 80")
        e("s_add_u32 s40, s40, s35")
        e("s_lshl_b32 s40, s40, 18")
        e(f"s_add_u32 {s(SRD_B)}, s30, s40")
        e(f"s_addc_u32 {s(SRD_B+1)}, s31, 0")
        e(f"s_and_b32 {s(SRD_B+1)}, {s(SRD_B+1)}, 0xffff")
        e(f"s_mov_b32 {s(SRD_B+2)}, 262144")
        e(f"s_mov_b32 {s(SRD_B+3)}, 0x20000")
        e("s_lshl_b32 s40, s37, 8")
        e(f"s_add_u32 {s(SRD_A)}, s38, s40")
        e(f"s_addc_u32 {s(SRD_A+1)}, s39, 0")
        e(f"s_and_b32 {s(SRD_A+1)}, {s(SRD_A+1)}, 0xffff")
        e(f"s_sub_u32 {s(SRD_A+2)}, 5242880, s40")
        e(f"s_mov_b32 {s(SRD_A+3)}, 0x20000")
        e(f"s_mov_b32 {s(SRD_OUT)}, s28")
        e(f"s_and_b32 {s(SRD_OUT+1)}, s29, 0xffff")
        e(f"s_mov_b32 {s(SRD_OUT+2)}, 6553600")
        e(f"s_mov_b32 {s(SRD_OUT+3)}, 0x20000")
        e(f"s_mul_i32 {s(S_OUT)}, s35, 81920")
        e("s_mul_i32 s41, s34, 1280")
        e(f"s_add_u32 {s(S_OUT)}, {s(S_OUT)}, s41")
        e(f"s_add_u32 {s(S_OUT)}, {s(S_OUT)}, s40")
        e(f"s_lshl_b32 {s(S_LDS)}, {s(S_W)}, 13")
        e(f"s_mul_i32 {s(S_AOFF)}, {s(S_W)}, {32*1280}")
        e(f"s_mov_b32 {s(S_BOFF)}, 0")
        L = 2
        e(f"v_lshlrev_b32 {v(VO)}, 4, {v(L)}")
        e("v_lshrrev_b32 v16, 2, v2"); e("v_and_b32 v16, 3, v16")
        e("v_lshrrev_b32 v17, 5, v2")
        e("v_lshrrev_b32 v18, 4, v2"); e("v_and_b32 v18, 1, v18")
        e("v_lshlrev_b32 v19, 2, v17"); e("v_add_u32 v19, v19, v16"); e("v_lshlrev_b32 v19, 8, v19")
        e("v_lshlrev_b32 v20, 5, v18"); e("v_add_u32 v19, v19, v20")
        e("v_and_b32 v20, 2, v2"); e("v_lshlrev_b32 v20, 3, v20"); e("v_add_u32 v19, v19, v20")
        e("v_and_b32 v20, 1, v2"); e("v_lshlrev_b32 v20, 3, v20"); e("v_add_u32 v19, v19, v20")
        for t in range(4):
            e(f"v_xor_b32 v20, {t}, v16"); e("v_lshlrev_b32 v20, 6, v20")
            e(f"v_add_u32 {v(AA+t)}, v19, v20")
            e(f"v_add_u32 {v(AAH+t)}, 0x10000, {v(AA+t)}")
        e("v_lshrrev_b32 v16, 4, v2"); e("v_and_b32 v17, 15, v2")
        e("v_lshlrev_b32 v18, 2, v16"); e("v_xor_b32 v18, v18, v17"); e("v_lshlrev_b32 v18, 4, v18")
        e("v_mul_u32_u24 v16, 1280, v16"); e(f"v_add_u32 {v(VA)}, v16, v18")
        e("v_and_b32 v16, 31, v2"); e("v_mul_u32_u24 v16, 2560, v16")
        e("v_lshrrev_b32 v17, 5, v2"); e("v_lshlrev_b32 v17, 4, v17"); e(f"v_add_u32 {v(VOUT)}, v16, v17")
        for j in range(64):
            e(f"v_mov_b32 {v(ACC+j)}, 0")
        for c in range(3):
            for k in range(8):
                self.load_B(c, k)(); self.dma_A(c, k)()
        self.first = True
        for c in range(0, 4):
            self.chunk(c)
        self.first = False
        e(f"s_mov_b32 {s(S_LOOP)}, 7")
        A.label(f"{self.name}_loop")
        st = len(A.lines)
        for c in range(4, 8):
            self.chunk(c)
        body1 = A.lines[st:]
        e(f"s_sub_u32 {s(S_LOOP)}, {s(S_LOOP)}, 1")
        e(f"s_cmp_lg_u32 {s(S_LOOP)}, 0")
        e(f"s_cbranch_scc1 {self.name}_loop")
        save = A.lines; A.lines = []
        for c in range(8, 12):
            self.chunk(c)
        assert A.lines == body1
        A.lines = save
        self.group(31, 7, 1, [], [])
        e("s_nop 15")
        P = 128
        for t in range(4):
            for k in range(8):
                e(f"v_cvt_pk_bf16_f32 {v(P+8*(t%2)+k)}, {v(ACC+16*t+2*k)}, {v(ACC+16*t+2*k+1)}")
            b = P + 8*(t % 2)
            e("s_nop 1")
            for pr in range(2):
                e(f"v_permlane32_swap_b32 {v(b+4*pr)}, {v(b+4*pr+2)}")
                e(f"v_permlane32_swap_b32 {v(b+4*pr+1)}, {v(b+4*pr+3)}")
            for pr in range(2):
                A.vmem(f"buffer_store_dwordx4 {v(b+4*pr,4)}, {v(VOUT)}, {s(SRD_OUT,4)}, {s(S_OUT)} offen offset:{t*64+pr*32}", "ST")
        e("s_waitcnt vmcnt(0)")
        A.label(f"{self.name}_done")
        e("s_endpgm")
        return A.text()
```

```python
import sys, k1, k2
HDR = open('concat_heads__mha_block_cached__mha_block_cached__near_ridge.s.ref').read().split('; Override launch')[0]
def kd(name, vgpr, acc, sgpr=100):
    return f""".amdhsa_kernel {name}
  .amdhsa_next_free_vgpr {vgpr}
  .amdhsa_next_free_sgpr {sgpr}
  .amdhsa_accum_offset {acc}
  .amdhsa_group_segment_fixed_size 0
  .amdhsa_kernarg_size 104
  .amdhsa_user_sgpr_count 2
  .amdhsa_user_sgpr_kernarg_segment_ptr 1
  .amdhsa_system_sgpr_workgroup_id_x 1
.end_amdhsa_kernel
"""
def build(only=None, **kw):
    out = [HDR]
    if only != 2:
        out.append("; @launch kernel=attn_kernel grid=(256,1,1) block=(256,1,1) lds=163840\n")
    if only != 1:
        out.append("; @launch kernel=oproj_kernel grid=(200,1,1) block=(256,1,1) lds=131072\n")
    out.append('.amdgcn_target "amdgcn-amd-amdhsa--gfx950"\n.text\n')
    for nm, gen in (("attn_kernel", k1.K1(**kw)), ("oproj_kernel", k2.K2())):
        out.append(f".globl {nm}\n.p2align 8\n.type {nm},@function\n")
        out.append(gen.build())
    out.append('.section .rodata,"a"\n.p2align 6\n')
    out.append(kd("attn_kernel", 512, 256))
    out.append('.p2align 6\n')
    out.append(kd("oproj_kernel", 288, 160, 48))
    return "".join(out)
if __name__ == "__main__":
    path = sys.argv[1] if len(sys.argv) > 1 else 'concat_heads__mha_block_cached__mha_block_cached__near_ridge.s'
    open(path, 'w').write(build())
    print("written", path)
```
